```python
import torch

def _softmax(x, axis=-1):
    return torch.softmax(x, dim=axis)
def _gelu(x):
    return torch.nn.functional.gelu(x, approximate="tanh")
def _silu(x):
    return torch.nn.functional.silu(x)
def _sigmoid(x):
    return torch.sigmoid(x)
def _layernorm(x, axis=-1, eps=1e-5):
    m = x.mean(dim=axis, keepdim=True)
    v = x.var(dim=axis, keepdim=True, unbiased=False)
    return (x - m) / torch.sqrt(v + eps)
def _scatter_add(tgt, idx, src, axis=0):
    return tgt.clone().index_add_(axis, idx, src)
def _segment_sum(src, seg, n):
    out = torch.zeros((n,) + src.shape[1:], dtype=src.dtype)
    return out.index_add_(0, seg, src)
def _pad(x, pw):
    flat = tuple(v for pair in reversed(pw) for v in pair)
    return torch.nn.functional.pad(x, flat)

kernel_name = 'concat_heads__spectral_fnet__ssm_conv_h3__prompt'

def setup_inputs():

    _w = (lambda a: (lambda t: t.to(torch.bfloat16) if t.is_floating_point() else t)(torch.as_tensor(a)))
    def _A_setup():
        B, S, D = 1, 2048, 640
        ns = torch.arange(S)[:, None] * torch.arange(S)[None, :]
        nd = torch.arange(D)[:, None] * torch.arange(D)[None, :]
        Ws_re = torch.cos(-2.0 * torch.pi * ns / S).to(float)
        Ws_im = torch.sin(-2.0 * torch.pi * ns / S).to(float)
        Wd_re = torch.cos(-2.0 * torch.pi * nd / D).to(float)
        Wd_im = torch.sin(-2.0 * torch.pi * nd / D).to(float)
        return {
            "x": _w((lambda *s: torch.randn(*s, dtype=torch.bfloat16) * 0.05)(B, S, D)),
            "dft_seq_re": _w(Ws_re),
            "dft_seq_im": _w(Ws_im),
            "dft_hid_re": _w(Wd_re),
            "dft_hid_im": _w(Wd_im),
        }
    _A_in = _A_setup()

    def _B_setup():
        B, S, D = 1, 2048, 640
        ks = 4
        return {
            "q": _w((lambda *s: torch.randn(*s, dtype=torch.bfloat16) * 0.05)(B, S, D)),
            "k": _w((lambda *s: torch.randn(*s, dtype=torch.bfloat16) * 3.2)(B, S, D)),
            "v": _w((lambda *s: torch.randn(*s, dtype=torch.bfloat16) * 3.2)(B, S, D)),
            "shift_k": _w((lambda *s: torch.randn(*s, dtype=torch.bfloat16) * 3.2)(D, ks) * 0.5),
            "ssm_k": _w((lambda *s: torch.randn(*s, dtype=torch.bfloat16) * 3.2)(D, S) * (1.0 / S ** 0.5)),
            "ssm_D": _w((lambda *s: torch.randn(*s, dtype=torch.bfloat16) * 3.2)(D)),
        }
    _B_in = _B_setup()

    return {
        "A_x": _A_in["x"],
        "A_dft_seq_re": _A_in["dft_seq_re"],
        "A_dft_seq_im": _A_in["dft_seq_im"],
        "A_dft_hid_re": _A_in["dft_hid_re"],
        "A_dft_hid_im": _A_in["dft_hid_im"],
        "B_q": _B_in["q"],
        "B_k": _B_in["k"],
        "B_v": _B_in["v"],
        "B_shift_k": _B_in["shift_k"],
        "B_ssm_k": _B_in["ssm_k"],
        "B_ssm_D": _B_in["ssm_D"],
    }

def reference(A_x, A_dft_seq_re, A_dft_seq_im, A_dft_hid_re, A_dft_hid_im, B_q, B_k, B_v, B_shift_k, B_ssm_k, B_ssm_D):
    def _A_ref(x, dft_seq_re, dft_seq_im, dft_hid_re, dft_hid_im):
        a = torch.einsum("bsd,ed->bse", x, dft_hid_re)
        b = torch.einsum("bsd,ed->bse", x, dft_hid_im)
        y = torch.einsum("ts,bse->bte", dft_seq_re, a) - torch.einsum("ts,bse->bte", dft_seq_im, b)
        return y

    def _B_ref(q, k, v, shift_k, ssm_k, ssm_D):
        B, S, D = q.shape
        ks = shift_k.shape[-1]
        k_pad = _pad(k, ((0, 0), (ks - 1, 0), (0, 0)))
        k_shift = torch.zeros_like(k)
        for t in range(ks):
            k_shift = k_shift + k_pad[:, t:t + S, :] * shift_k[:, ks - 1 - t][None, None, :]
        kv = k_shift * v
        L = 2 * S
        kv_pad = _pad(kv, ((0, 0), (0, S), (0, 0)))
        kf_pad = _pad(ssm_k, ((0, 0), (0, S)))
        kv_f = (lambda x, axes=(-2,-1): torch.fft.rfft2(x.float(), dim=axes))(kv_pad[:, None, :, :], axes=(1, 2))
        kf_f = (lambda x, axes=(-2,-1): torch.fft.rfft2(x.float(), dim=axes))(kf_pad[:, None, :], axes=(1, 2))
        kf_f = (lambda x, *d: x.permute(*d))(kf_f, 1, 2, 0)
        y_f = kv_f * kf_f[None, :, :, :]
        y = (lambda x, s, axes=(-2,-1): torch.fft.irfft2(x, s=s, dim=axes).to(torch.bfloat16))(y_f, (1, L), axes=(1, 2))[:, 0, :S, :]
        y = y + kv * ssm_D[None, None, :]
        return q * y

    a = _A_ref(A_x, A_dft_seq_re, A_dft_seq_im, A_dft_hid_re, A_dft_hid_im)
    b = _B_ref(B_q, B_k, B_v, B_shift_k, B_ssm_k, B_ssm_D)
    return torch.concatenate([a, b], axis=-1)
```

```python
class Asm:
    def __init__(self):
        self.lines = []
        self.launches = []
        self.kds = []
        self.uid = 0
    def __call__(self, s):
        for l in s.strip("\n").split("\n"):
            self.lines.append("    " + l.strip())
    def label(self, name):
        self.lines.append(name + ":")
    def newlabel(self, p="L"):
        self.uid += 1
        return "%s_%d" % (p, self.uid)
    def comment(self, s):
        self.lines.append("    ; " + s)
    def kernel(self, name):
        self.lines += [".globl %s" % name, ".p2align 8", ".type %s,@function" % name, name + ":"]
    def launch(self, name, grid, block, lds):
        self.launches.append("; @launch kernel=%s grid=(%d,1,1) block=(%d,1,1) lds=%d" % (name, grid, block, lds))
    def kd(self, name, vgpr, sgpr=96, agpr=0):
        acc = (vgpr + 3) // 4 * 4
        nfv = acc + agpr if agpr else vgpr
        self.kds.append("""
.p2align 6
.amdhsa_kernel %s
  .amdhsa_next_free_vgpr %d
  .amdhsa_next_free_sgpr %d
  .amdhsa_accum_offset %d
  .amdhsa_group_segment_fixed_size 0
  .amdhsa_kernarg_size 112
  .amdhsa_user_sgpr_count 2
  .amdhsa_user_sgpr_kernarg_segment_ptr 1
  .amdhsa_system_sgpr_workgroup_id_x 1
.end_amdhsa_kernel""" % (name, nfv, sgpr, acc))
    def srd(self, d, b, size, word1_mask=True):
        self("s_mov_b32 s%d, s%d" % (d, b))
        self("s_and_b32 s%d, s%d, 0xffff" % (d + 1, b + 1))
        self("s_mov_b32 s%d, 0x%x" % (d + 2, size))
        self("s_mov_b32 s%d, 0x00020000" % (d + 3))
    def text(self, header=""):
        out = header + "\n".join(self.launches) + "\n"
        out += '.amdgcn_target "amdgcn-amd-amdhsa--gfx950"\n.text\n'
        out += "\n".join(self.lines) + "\n"
        out += '.section .rodata,"a"\n' + "\n".join(self.kds) + "\n"
        return out
KA = dict(x=0, wsr=8, wsi=16, wdr=24, wdi=32, q=40, k=48, v=56, shift=64, h=72, D=80, out=88, dbg=96, ws=104)
```

```python
import re
REG = re.compile(r'^(-|\|)?(abs\()?([vsa])(\d+|\[(\d+):(\d+)\])\)?\|?$')
def regs(op):
    op = op.strip()
    if op in ("vcc", "vcc_lo", "vcc_hi"): return {("s", "vcc")}
    if op in ("exec", "exec_lo", "exec_hi"): return {("s", "exec")}
    if op == "m0": return {("s", "m0")}
    m = REG.match(op)
    if not m: return set()
    t = m.group(3)
    if m.group(5) is not None: return {(t, i) for i in range(int(m.group(5)), int(m.group(6)) + 1)}
    return {(t, int(m.group(4)))}
TRANS = ("v_exp_", "v_log_", "v_rcp_", "v_rsq_", "v_sqrt_", "v_sin_", "v_cos_")
class I:
    def __init__(self, text):
        self.text = text
        t = text.split(";")[0].strip()
        self.label = t[:-1] if t.endswith(":") else None
        self.isinst = bool(t) and self.label is None and not t.startswith(".")
        self.mn = ""; self.w = set(); self.r = set(); self.ab = set(); self.c = set(); self.kind = None
        self.states = 0; self.target = None; self.data = set()
        if not self.isinst: return
        parts = t.split(None, 1)
        mn = self.mn = parts[0]
        rest = parts[1] if len(parts) > 1 else ""
        ops = [o.strip() for o in re.split(r',(?![^\[]*\])', rest)] if rest else []
        mods = ""
        if ops:
            last = ops[-1].split(None, 1)
            ops[-1] = last[0]
            mods = last[1] if len(last) > 1 else ""
        self.mods = mods; self.ops = ops
        R = [regs(o) for o in ops]
        self.states = 1
        if mn == "s_nop": self.states = int(ops[0], 0) + 1; self.kind = "nop"; return
        if mn.startswith("v_mfma"):
            self.kind = "mfma"; self.w = R[0]; self.ab = R[1] | R[2]; self.c = R[3]; self.r = self.ab | self.c
            self.passes = 8 if "32x32" in mn else 4
        elif mn.startswith("v_"):
            self.kind = "valu"
            self.dpp = ("dpp" in mn) or any(k in mods for k in ("row_shr", "row_shl", "row_ror", "quad_perm", "row_bcast", "wave_sh", "row_mirror", "row_half_mirror", "row_newbcast"))
            self.trans = mn.startswith(TRANS)
            if mn.startswith("v_permlane"):
                self.w = R[0] | R[1]; self.r = R[0] | R[1]
            elif mn.startswith(("v_add_co", "v_sub_co", "v_addc_co", "v_subb_co", "v_subrev_co", "v_mad_u64")):
                self.w = R[0] | R[1]; self.r = set().union(*R[2:])
            else:
                self.w = R[0]; self.r = set().union(*R[1:]) if len(R) > 1 else set()
                if mn.startswith(("v_fmac", "v_pk_fmac", "v_dot2c", "v_writelane", "v_mac")) or self.dpp: self.r |= R[0]
                if mn.startswith("v_cmpx"): self.w |= {("s", "exec")}
        elif mn.startswith("ds_"):
            self.kind = "ds"
            if mn.startswith(("ds_read", "ds_bpermute", "ds_permute", "ds_swizzle")) or "_rtn" in mn:
                self.w = R[0]; self.r = set().union(*R[1:])
            else: self.r = set().union(*R)
        elif mn.startswith(("buffer_", "global_")):
            self.kind = "vmem"
            lds = " lds" in (" " + mods) or "load_lds" in mn
            if lds: self.r = set().union(*R) | {("s", "m0")}; self.ldsdma = True
            elif "load" in mn: self.w = R[0]; self.r = set().union(*R[1:])
            elif mn.startswith("buffer_inv") or mn.startswith("buffer_wb"): pass
            else:
                self.r = set().union(*R)
                if "atomic" in mn and "sc0" in mods: self.w = R[0]
                if mn.endswith(("x3", "x4")): self.data = R[0] if mn.startswith("buffer_") else R[1]
        elif mn.startswith("s_"):
            self.kind = "salu"
            if mn.startswith(("s_cbranch", "s_branch")): self.target = ops[0]; self.kind = "branch"
            elif mn in ("s_endpgm",): self.kind = "end"
            elif mn.startswith(("s_waitcnt", "s_barrier", "s_setprio", "s_sleep", "s_cmp", "s_bitcmp")): self.r = set().union(*R) if R else set()
            else:
                self.w = R[0] if R else set(); self.r = set().union(*R[1:]) if len(R) > 1 else set()
                if "saveexec" in mn: self.w |= {("s", "exec")}
def isv(s): return {x for x in s if x[0] in "va"}
def iss(s): return {x for x in s if x[0] == "s"}
def need(p, c):
    n = 0
    if p.kind == "valu":
        wv = isv(p.w); ws = iss(p.w)
        if c.kind == "mfma" and wv & c.r: n = max(n, 2)
        if c.kind == "mfma" and ("s", "exec") in ws: n = max(n, 4)
        if c.kind == "valu":
            if wv & c.r:
                if c.mn.startswith(("v_readfirstlane", "v_readlane")): n = max(n, 1)
                if c.dpp or c.mn.startswith("v_permlane"): n = max(n, 2)
                if p.trans: n = max(n, 1)
                if "op_sel" in p.mods and not p.mn.startswith("v_pk") or "sdwa" in p.mn or "dst_sel" in p.mods: n = max(n, 1)
            if ws & c.r:
                n = max(n, 4 if c.mn.startswith(("v_readlane", "v_writelane")) else 2)
            if ("s", "exec") in ws and (c.dpp or c.mn.startswith(("v_readlane", "v_readfirstlane", "v_writelane", "v_permlane"))): n = max(n, 5)
        if c.kind == "vmem" and ws & c.r: n = max(n, 5)
        if c.kind in ("salu", "branch") and ws & c.r: n = max(n, 1)
    if p.kind == "mfma":
        big = {4: 8, 8: 12}[p.passes]
        if c.kind == "mfma":
            if p.w & c.ab: n = max(n, big)
            if p.w & c.c and not (p.w == c.c and p.passes == c.passes): n = max(n, big - 2)
            if p.w & c.w and not (p.w & c.c): n = max(n, big)
        elif c.kind in ("valu", "ds", "vmem"):
            if p.w & (c.r | c.w): n = max(n, big)
            if c.kind == "valu" and p.c & c.w: n = max(n, {4: 3, 8: 7}[p.passes])
    if p.kind == "salu" and ("s", "m0") in p.w and c.kind == "vmem" and ("s", "m0") in c.r: n = max(n, 1)
    if p.kind == "vmem" and p.data and (p.data & c.w): n = max(n, 2 if c.kind in ("valu", "mfma") else 1)
    return n
def fix(lines, verbose=False):
    ins = [I(l) for l in lines]
    total = 0
    changed = True
    while changed:
        changed = False
        lab = {x.label: i for i, x in enumerate(ins) if x.label}
        add = {}
        for i, p in enumerate(ins):
            if not p.isinst or p.kind not in ("valu", "mfma", "salu", "vmem"): continue
            stack = [(i + 1, 0)]; seen = {}
            while stack:
                j, d = stack.pop()
                while j < len(ins) and d < 13:
                    if seen.get(j, 99) <= d: break
                    seen[j] = d
                    c = ins[j]
                    if c.isinst:
                        nd = need(p, c)
                        if nd > d:
                            add[j] = max(add.get(j, 0), nd - d)
                            d = nd
                        d += c.states
                        if c.kind == "end": break
                        if c.kind == "branch":
                            if c.target in lab: stack.append((lab[c.target], d))
                            if c.mn == "s_branch": break
                    j += 1
        if add:
            j = min(add)
            n = add[j]
            if verbose: print("hazard: +%d before: %s" % (n, ins[j].text.strip()))
            ins.insert(j, I("    s_nop %d" % (n - 1)))
            total += 1
            changed = True
    return [x.text for x in ins], total
```

```python
import sys, struct
from asmlib import *
import hazard

def f32(x): return "0x%08x" % struct.unpack("<I", struct.pack("<f", x))[0]
def vr(b, n=1): return "v%d" % b if n == 1 else "v[%d:%d]" % (b, b + n - 1)
def sr(b, n=1): return "s%d" % b if n == 1 else "s[%d:%d]" % (b, b + n - 1)
def opt(name, default):
    for x in sys.argv:
        if x.startswith("-" + name + "="): return int(x.split("=")[1])
    return default

KNAME = "concat_heads__spectral_fnet__ssm_conv_h3__prompt_kernel"
KVT_OFF = 0
QT_OFF = 0x280000
V_OFF = 0x500000
BD_OFF = 0x640000
FL_OFF = 0x690000
WS_SIZE = 0x1000000
S_DELTA = 0x800000
FB_AT = opt('fb', 24)
AFL = opt('afl', 7)
ASL = opt('asl', 4)
MFMA = "v_mfma_f32_16x16x32_bf16"
DIAG = opt("diag", -1)
DIAGA = opt("diaga", -1)
PROF = "-p" in sys.argv or "-dbg" in sys.argv or DIAG >= 0 or DIAGA >= 0
ST_OFF = 0x6A0000
SC = "sc1"
NT = "nt" if opt("nt", 1) else ""
SPIN_MAX = 40000
POL = ['', 'nt', 'sc1', 'sc0 sc1', 'sc0']
AO = POL[opt('ao', 2)]
BO = POL[opt('bo', 2)]
MB = POL[opt('mb', 0)]
WB = opt('wb', 8)
HSPLIT = opt('hs', 1)
TBAR = opt('tb', 28)
PW1 = POL[opt('pw1', 0)]
PW2 = POL[opt('pw2', 0)]
MB2 = POL[opt('mb2', 1)]
WB2 = opt('wb2', -1)
NOST = opt('nost', 0)
SLEEP = opt("sl", 4)
SWS, SO, SDBG = 12, 16, 20
S_NONCE = 60

def common_srds(a):
    a.srd(SWS, 6, WS_SIZE); a.srd(SO, 8, 5242880); a.srd(SDBG, 10, 256)
TLB = opt('tlb', 0)
def tlb_touch(a, wave, vt, vd, extra=None):
    if not TLB: return
    L = a.newlabel("TT")
    a("s_cmp_lg_u32 s3, %d\n s_cbranch_scc1 %s\n v_lshlrev_b32 %s, %d, v1" % (wave, L, vr(vt), TLB))
    if TLB > 17: a("s_mov_b64 exec, 0x%x" % ((1 << (1 << (23 - TLB))) - 1))
    a("buffer_load_dword %s, %s, %s, 0 offen" % (vr(vd), vr(vt), sr(SO, 4)))
    a("buffer_load_dword %s, %s, %s, 0 offen offset:64" % (vr(vd), vr(vt), sr(SWS, 4)))
    if extra is not None: a("buffer_load_dword %s, %s, %s, 0 offen" % (vr(vd), vr(vt), sr(extra, 4)))
    a("s_mov_b64 exec, -1")
    a.label(L)
def stamp(a, k):
    if PROF: a("s_memrealtime s[%d:%d]" % (64 + 2 * k, 65 + 2 * k))
DBG = "-dbg" in sys.argv
def endp(a, sel=None):
    if DIAG >= 0 or DIAGA >= 0:
        isb = len(sel) > 5
        k = DIAG if isb else DIAGA
        if k >= 0:
            L, L2 = a.newlabel("DG"), a.newlabel("DH")
            a("s_waitcnt vmcnt(0)")
            stamp(a, 15)
            a("s_cmp_lg_u32 s3, %d\n s_cbranch_scc1 %s\n s_waitcnt lgkmcnt(0)" % (4 if isb else 7, L))
            a("s_sub_u32 s61, s%d, s%d\n s_add_u32 s61, s61, 200\n s_min_u32 s61, s61, 5000\n s_mul_i32 s61, s61, 10\n s_add_u32 s61, s61, s94" % ((64 + 2 * k, S_NONCE) if not opt("neg", 0) else (S_NONCE, 64 + 2 * k)))
            if opt("fix", 0):
                a("s_add_u32 s61, s%d, 3000" % S_NONCE)
                if opt("fix", 0) == 2:
                    L3 = a.newlabel("DW")
                    a("s_cmp_lg_u32 s29, 0\n s_cbranch_scc1 %s\n s_sleep 127\n buffer_wbl2 sc1\n s_waitcnt vmcnt(0)" % L3)
                    a.label(L3)
            a.label(L2)
            a("s_memrealtime s[62:63]\n s_waitcnt lgkmcnt(0)\n s_sub_u32 s62, s61, s62\n s_cmp_gt_i32 s62, 0\n s_cbranch_scc1 %s" % L2)
            a.label(L)
    elif DBG:
        L = a.newlabel("DE")
        a("s_waitcnt vmcnt(0)")
        stamp(a, 15)
        a("s_cmp_lg_u32 s3, 0\n s_cbranch_scc1 %s\n s_mov_b64 exec, 1\n s_waitcnt lgkmcnt(0)\n v_mov_b32 v7, 0" % L)
        for w, k in sel:
            if k < 0: a("s_not_b32 s61, s64\n v_mov_b32 v8, s61")
            else: a("v_mov_b32 v8, s%d" % (64 + 2 * k))
            a("buffer_atomic_umax v8, v7, %s, 0 offen offset:%d\n s_waitcnt vmcnt(0)" % (sr(SDBG, 4), 4 * w))
        a.label(L)
    elif PROF:
        a("s_waitcnt vmcnt(0)")
        stamp(a, 15)
        a("s_mov_b64 exec, 1")
        a("s_lshl_b32 s61, s2, 3\n s_add_u32 s61, s61, s3\n s_lshl_b32 s61, s61, 6\n s_add_u32 s61, s61, %d" % ST_OFF)
        a("s_waitcnt lgkmcnt(0)")
        for k in range(16): a("v_mov_b32 v%d, s%d" % (8 + k, 64 + 2 * k))
        a("v_mov_b32 v7, 0")
        for k in range(4):
            a("buffer_store_dwordx4 v[%d:%d], v7, %s, s61 offen offset:%d" % (8 + 4 * k, 11 + 4 * k, sr(SWS, 4), 16 * k))
    a("s_endpgm")

def nonce_issue(a):
    a("s_load_dword s%d, s[10:11], 0" % S_NONCE)
def nonce_get(a, v, vz):
    L, Ld = a.newlabel("NL"), a.newlabel("ND")
    a("s_mov_b32 s62, %d" % SPIN_MAX)
    a.label(L)
    a("s_cmp_lg_u32 s%d, 0\n s_cbranch_scc1 %s" % (S_NONCE, Ld))
    a("s_sub_u32 s62, s62, 1\n s_cbranch_scc1 %s" % Ld)
    a("s_sleep 8")
    a("buffer_load_dword %s, %s, %s, 0 offen %s" % (vr(v), vr(vz), sr(SDBG, 4), SC))
    a("s_waitcnt vmcnt(0)")
    a("v_readfirstlane_b32 s%d, %s" % (S_NONCE, vr(v)))
    a("s_branch %s" % L)
    a.label(Ld)
def ldswait(a, v, vaddr, off, val, sleep=0):
    L, Ld = a.newlabel("WL"), a.newlabel("WD")
    a("s_mov_b32 s62, %d" % (SPIN_MAX * 8))
    a.label(L)
    if sleep: a("s_sleep %d" % sleep)
    a("ds_read_b32 %s, %s offset:%d" % (vr(v), vr(vaddr), off))
    a("s_sub_u32 s62, s62, 1\n s_cbranch_scc1 %s" % Ld)
    a("s_waitcnt lgkmcnt(0)")
    a("v_cmp_ne_u32 vcc, %d, %s" % (val, vr(v)) if val is not None else "v_cmp_eq_u32 vcc, 0, %s" % vr(v))
    a("s_cbranch_vccnz %s" % L)
    a.label(Ld)
def poll(a, v, vaddr, soff, off=0, sleep=None):
    L, Ld, L0 = a.newlabel("PL"), a.newlabel("PD"), a.newlabel("PS")
    a("s_mov_b32 s62, %d\n s_branch %s" % (SPIN_MAX, L0))
    a.label(L)
    a("s_sleep %d" % (sleep or SLEEP))
    a.label(L0)
    a("buffer_load_dword %s, %s, %s, %s offen offset:%d %s" % (vr(v), vr(vaddr), sr(SWS, 4), soff, off, SC))
    a("s_sub_u32 s62, s62, 1\n s_cbranch_scc1 %s" % Ld)
    a("s_waitcnt vmcnt(0)")
    a("v_cmp_ne_u32 vcc, s%d, %s" % (S_NONCE, vr(v)))
    a("s_cbranch_vccnz %s" % L)
    a.label(Ld)
def post(a, vtmp, vz, soff, off=0):
    a("v_mov_b32 %s, s%d\n s_mov_b64 exec, 1" % (vr(vtmp), S_NONCE))
    a("buffer_store_dword %s, %s, %s, %s offen offset:%d %s" % (vr(vtmp), vr(vz), sr(SWS, 4), soff, off, SC))
    a("s_mov_b64 exec, -1")

XT, XE, XA_ = 9, 10, 11
def xprep(a):
    a("""
    s_getreg_b32 s32, hwreg(HW_REG_XCC_ID)
    s_and_b32 s32, s32, 15
    s_add_u32 s32, s32, 1
    s_lshl_b32 s32, s32, 1
    s_xor_b32 s32, s32, s%d               ; tag of the same-die flag
    v_mov_b32 v9, s32
    s_lshl_b32 s63, s29, 2
    s_add_u32 s63, s63, s34
    v_mov_b32 v10, s%d
    v_and_b32 v11, 16, v1
    v_cmp_eq_u32 vcc, 0, v11
    v_lshlrev_b32 v11, 3, v11
    v_lshl_add_u32 v11, v2, 2, v11        ; flag address per lane
    v_cndmask_b32 v10, v10, v9, vcc       ; expected value per lane
    """ % (S_NONCE, S_NONCE))
def exchange(a, foff, vsrc, ssrc, stride, delta):
    L, L0, Ld, Lc = [a.newlabel(x) for x in ("XL", "XS", "XD", "XC")]
    a("s_mov_b64 exec, 1")
    a("buffer_store_dword v9, v24, %s, s63 offen offset:%d" % (sr(SWS, 4), foff))
    a("s_mov_b64 exec, -1\n s_mov_b32 s62, 0")
    if opt('pp', 0): a("s_mov_b32 s33, 0\n s_cmp_eq_u32 s49, 0\n s_cbranch_scc1 %s" % Ld)
    a("s_branch %s" % L0)
    a.label(Lc)
    a("buffer_load_dwordx4 v[32:35], %s, %s, %s offen %s" % (vr(vsrc), sr(SWS, 4), ssrc, SC))
    a("s_add_u32 s33, %s, %d\n s_waitcnt vmcnt(0)" % (ssrc, delta))
    a("buffer_store_dwordx4 v[32:35], %s, %s, s33 offen %s" % (vr(vsrc), sr(SWS, 4), SC))
    a("s_add_u32 %s, %s, %d\n s_add_u32 s32, s32, 1\n s_cmp_lt_u32 s32, 16\n s_waitcnt vmcnt(0)\n s_cbranch_scc1 %s" % (ssrc, ssrc, stride, Lc))
    post(a, 4, 24, "s63", foff + 128)
    a.label(L)
    if SLEEP: a("s_sleep %d" % SLEEP)
    a.label(L0)
    a("buffer_load_dword v4, v11, %s, s34 offen offset:%d %s" % (sr(SWS, 4), foff, SC))
    a("s_add_u32 s62, s62, 1\n s_mov_b32 s33, 0")
    a("s_waitcnt vmcnt(0)")
    a("v_cmp_ne_u32 vcc, v4, v10")
    a("s_and_b32 s32, vcc_lo, 0xffff\n s_cbranch_scc0 %s" % Ld)
    a("s_mov_b32 s33, %d\n s_lshr_b32 s32, vcc_lo, 16\n s_cbranch_scc0 %s" % (delta, Ld))
    a("s_mov_b32 s32, 0\n s_cmp_eq_u32 s62, %d\n s_cbranch_scc1 %s" % (FB_AT, Lc))
    a("s_cmp_lt_u32 s62, %d\n s_cbranch_scc1 %s" % (SPIN_MAX, L))
    a.label(Ld)

A1_WS = 6944
A2_LDS = 8 * A1_WS
def role_a(a):
    SX = 24
    a("v_and_b32 v2, 15, v1\n v_lshrrev_b32 v3, 4, v1\n v_mov_b32 v83, 0\n v_mov_b32 v79, 0")
    a("s_cmp_lt_u32 s28, 64\n s_cbranch_scc1 A1_go\n s_waitcnt lgkmcnt(0)")
    common_srds(a)
    tlb_touch(a, 7, 221, 222)
    a("s_branch A1_done")
    a.label("A1_go")
    a("""
    s_sub_u32 s29, 128, s28
    s_cmp_eq_u32 s28, 0
    s_cselect_b32 s29, 64, s29            ; gamma'
    s_cmp_lt_u32 s3, 4
    s_cselect_b32 s32, s28, s29           ; row offset of this wave
    s_and_b32 s30, s3, 3
    s_lshl_b32 s30, s30, 9
    s_add_u32 s30, s30, s32               ; first row
    s_mul_i32 s30, s30, 1280
    s_mul_i32 s31, s3, %d                 ; lds base of the wave
    v_mul_u32_u24 v4, 163840, v3
    v_lshl_add_u32 v4, v2, 4, v4
    s_mov_b32 m0, s31
    s_waitcnt lgkmcnt(0)
    """ % A1_WS)
    a.srd(SX, 4, 2621440)
    XD = opt('xd', 0)
    def xload():
        for i in range(5):
            a("buffer_load_dwordx4 v4, %s, s30 offen offset:%d %s lds" % (sr(SX, 4), 256 * i, NT))
            if i < 4: a("s_add_u32 m0, m0, 800")
    if XD == 0: xload()
    common_srds(a)
    tlb_touch(a, 7, 221, 222)
    stamp(a, 1)
    B1R, B1I = 8, 12
    C0, S0, NS0, C1, S1, NC1 = 16, 20, 24, 28, 32, 36
    TC, TS = 40, 48
    F3 = 56
    XA = 72
    T = 84
    a("""
    v_lshrrev_b32 v5, 2, v2
    v_and_b32 v6, 3, v2
    v_lshl_add_u32 v5, v6, 2, v5          ; e1
    v_cvt_f32_u32 v5, v5
    v_lshlrev_b32 v6, 2, v3
    v_cvt_f32_u32 v6, v6                  ; 4g
    v_mul_f32 v80, %s, v5                 ; e1/20
    v_cvt_f32_u32 v81, v3                 ; g
    """ % f32(1.0 / 20))
    for j in range(5):
        if j < 4: a("v_add_f32 v7, %s, v6" % f32(float(j)))
        else: a("v_add_f32 v7, %s, v81" % f32(16.0))
        a("v_mul_f32 v7, v7, v80")
        a("v_cos_f32 %s, v7\n v_sin_f32 %s, v7" % (vr(T + j), vr(T + 8 + j)))
    a("v_mov_b32 %s, 0\n v_mov_b32 %s, 0" % (vr(B1R + 3), vr(B1I + 3)))
    a("v_cvt_pk_bf16_f32 %s, %s, %s" % (vr(B1R), vr(T), vr(T + 1)))
    a("v_cvt_pk_bf16_f32 %s, %s, %s" % (vr(B1R + 1), vr(T + 2), vr(T + 3)))
    a("v_cvt_pk_bf16_f32 %s, %s, 0" % (vr(B1R + 2), vr(T + 4)))
    a("v_cvt_pk_bf16_f32 %s, -%s, -%s" % (vr(B1I), vr(T + 8), vr(T + 9)))
    a("v_cvt_pk_bf16_f32 %s, -%s, -%s" % (vr(B1I + 1), vr(T + 10), vr(T + 11)))
    a("v_cvt_pk_bf16_f32 %s, -%s, 0" % (vr(B1I + 2), vr(T + 12)))
    a("v_mul_f32 v5, %s, v5" % f32(1.0 / 640))
    for h in range(2):
        for r in range(4):
            a("v_add_f32 v7, %s, v6" % f32(16.0 * h + r))
            a("v_mul_f32 v7, v7, v5")
            a("v_cos_f32 %s, v7" % vr(TC + 4 * h + r))
            a("v_sin_f32 %s, v7" % vr(TS + 4 * h + r))
    if XD == 1: xload()
    a("""
    v_cvt_f32_u32 v82, v2                 ; n
    v_mul_f32 v80, %s, v82                ; n/32
    v_and_b32 v81, 1, v2
    s_mov_b32 s38, 0x80008000
    v_mul_lo_u32 v81, v81, s38            ; parity sign mask
    """ % f32(1.0 / 32))
    for j in range(4):
        a("v_add_f32 v7, %s, v6" % f32(float(j)))
        a("v_mul_f32 v7, v7, v80")
        a("v_cos_f32 %s, v7\n v_sin_f32 %s, v7" % (vr(T + j), vr(T + 8 + j)))
    a("s_mov_b32 s39, 0x80000000\n s_mov_b32 s40, 0x00008000")
    for (R, t) in ((C0, T), (S0, T + 8)):
        a("v_cvt_pk_bf16_f32 %s, %s, %s" % (vr(R), vr(t), vr(t + 1)))
        a("v_cvt_pk_bf16_f32 %s, %s, %s" % (vr(R + 1), vr(t + 2), vr(t + 3)))
        a("v_xor_b32 %s, v81, %s\n v_xor_b32 %s, v81, %s" % (vr(R + 2), vr(R), vr(R + 3), vr(R + 1)))
    for i in range(4):
        a("v_xor_b32 %s, s38, %s" % (vr(NS0 + i), vr(S0 + i)))
        a("v_xor_b32 %s, s39, %s" % (vr(C1 + i), vr(C0 + i)))
        a("v_xor_b32 %s, s39, %s" % (vr(S1 + i), vr(S0 + i)))
        a("v_xor_b32 %s, s40, %s" % (vr(NC1 + i), vr(C0 + i)))
    a("""
    v_mul_u32_u24 v5, 1056, v3
    v_lshrrev_b32 v6, 2, v2               ; r'
    v_and_b32 v7, 3, v2                   ; c
    v_lshl_add_u32 v5, v6, 6, v5
    v_lshl_add_u32 v5, v7, 3, v5
    v_add_u32 v76, s31, v5
    v_lshlrev_b32 v5, 6, v3
    v_lshl_add_u32 v5, v7, 3, v5
    v_add_u32 v5, 4224, v5
    v_add_u32 v77, s31, v5
    v_mul_u32_u24 v5, 576, v3
    v_lshl_add_u32 v5, v2, 4, v5
    v_add_u32 v78, s31, v5
    """)
    if XD == 2: xload()
    a("s_cmp_ge_u32 s3, 6\n s_cbranch_scc1 A1_no3")
    a("v_mul_f32 v5, %s, v82\n v_lshlrev_b32 v79, 9, v3" % f32(1.0 / 2048))
    for ks in range(2):
        a("v_add_u32 v80, %s, v79" % ("s28" if ks == 0 else "s29"))
        a("v_cvt_f32_u32 v80, v80")
        for rho in range(4):
            a("v_add_f32 v81, %s, v80" % f32(128.0 * rho))
            a("v_mul_f32 v81, v81, v5")
            a("v_cos_f32 %s, v81\n v_sin_f32 %s, v81" % (vr(T + rho), vr(T + 8 + rho)))
        for rho in range(4):
            c, s = vr(T + rho), vr(T + 8 + rho)
            a("v_cvt_pk_bf16_f32 %s, %s, %s" % (vr(F3 + 4 * ks + rho), c, s))
            if ks == 0: a("v_cvt_pk_bf16_f32 %s, -%s, %s" % (vr(F3 + 8 + rho), s, c))
            else: a("v_cvt_pk_bf16_f32 %s, %s, -%s" % (vr(F3 + 12 + rho), s, c))
    a("s_cmp_lg_u32 s28, 0\n s_cbranch_scc1 A1_nog0")
    for rho in range(4):
        a("v_mov_b32 %s, %s" % (vr(F3 + 12 + rho), vr(F3 + 4 + rho)))
        a("v_mov_b32 %s, 0\n v_mov_b32 %s, 0" % (vr(F3 + 4 + rho), vr(F3 + 8 + rho)))
    a.label("A1_nog0")
    a("""
    s_lshl_b32 s33, s3, 6
    v_lshl_add_u32 v5, v7, 4, v6
    v_add_u32 v5, s33, v5
    s_cmp_lg_u32 s3, 5
    s_cbranch_scc1 A1_e0
    v_add_u32 v5, 1, v2
    v_min_u32 v5, 5, v5
    v_lshlrev_b32 v5, 6, v5
    """)
    a.label("A1_e0")
    a("""
    v_mul_u32_u24 v80, %d, v3             ; g*WS
    s_and_b32 s33, s28, 3
    s_lshl_b32 s33, s33, 2
    v_xor_b32 v79, s33, v2
    v_lshlrev_b32 v79, 4, v79
    v_mul_u32_u24 v7, 327680, v3
    v_add_u32 v79, v79, v7                ; V store voffset
    s_lshl_b32 s34, s28, 8
    s_lshl_b32 s33, s3, 14
    s_add_u32 s34, s34, s33
    s_add_u32 s34, s34, %d
    s_add_u32 s35, s34, 81920
    s_add_u32 s36, s35, 81920
    s_add_u32 s37, s36, 81920
    """ % (A1_WS, V_OFF))
    for th in range(4):
        a("""
        v_mul_u32_u24 v6, 3277, v5
        v_lshrrev_b32 v6, 16, v6              ; q20
        v_mul_u32_u24 v7, 20, v6
        v_sub_u32 v7, v5, v7                  ; m20
        v_cmp_gt_u32 vcc, 11, v7
        v_mul_u32_u24 v7, 576, v7
        v_lshl_add_u32 v7, v6, 4, v7
        v_sub_u32 v6, %d, v7
        v_cndmask_b32 v7, v6, v7, vcc
        v_add_u32 %s, v7, v80
        """ % (576 * 20 + 16 * 31, vr(XA + th)))
        if th < 3: a("v_add_u32 v5, 4, v5")
    a.label("A1_no3")
    if XD == 3: xload()
    stamp(a, 2)
    a("s_waitcnt vmcnt(0)")
    stamp(a, 3)
    XO = 84; D1 = 116; WR, WI = 132, 140; AR, AI = 148, 152; D2 = 156
    for rho in range(4):
        if rho == 3: a("s_waitcnt lgkmcnt(8)")
        for h in range(2):
            b = XO + 8 * rho + 4 * h
            a("ds_read_b64_tr_b16 %s, v76 offset:%d" % (vr(b, 2), 256 * rho + 32 * h))
            a("ds_read_b64_tr_b16 %s, v77 offset:%d" % (vr(b + 2, 2), 256 * rho + 32 * h))
    for rho in range(4):
        if rho: a("s_waitcnt lgkmcnt(%d)" % (12 - 4 * rho))
        for h in range(2):
            b = XO + 8 * rho + 4 * h
            a("%s %s, %s, %s, 0" % (MFMA, vr(D1 + 8 * h, 4), vr(b, 4), vr(B1R, 4)))
            a("%s %s, %s, %s, 0" % (MFMA, vr(D1 + 8 * h + 4, 4), vr(b, 4), vr(B1I, 4)))
        for h in range(2):
            for r in range(4):
                re, im = D1 + 8 * h + r, D1 + 8 * h + 4 + r
                k = 4 * h + r
                a("v_mul_f32 %s, %s, %s" % (vr(WR + k), vr(re), vr(TC + k)))
                a("v_mul_f32 %s, %s, %s" % (vr(WI + k), vr(im), vr(TC + k)))
                a("v_fmac_f32 %s, %s, %s" % (vr(WR + k), vr(im), vr(TS + k)))
                a("v_fma_f32 %s, -%s, %s, %s" % (vr(WI + k), vr(re), vr(TS + k), vr(WI + k)))
        for i in range(4):
            a("v_cvt_pk_bf16_f32 %s, %s, %s" % (vr(AR + i), vr(WR + 2 * i), vr(WR + 2 * i + 1)))
            a("v_cvt_pk_bf16_f32 %s, %s, %s" % (vr(AI + i), vr(WI + 2 * i), vr(WI + 2 * i + 1)))
        d = D2 + 16 * rho
        a("%s %s, %s, %s, 0" % (MFMA, vr(d, 4), vr(AR, 4), vr(C0, 4)))
        a("%s %s, %s, %s, 0" % (MFMA, vr(d + 4, 4), vr(AR, 4), vr(NS0, 4)))
        a("%s %s, %s, %s, 0" % (MFMA, vr(d + 8, 4), vr(AR, 4), vr(C1, 4)))
        a("%s %s, %s, %s, 0" % (MFMA, vr(d + 12, 4), vr(AR, 4), vr(S1, 4)))
        a("%s %s, %s, %s, %s" % (MFMA, vr(d, 4), vr(AI, 4), vr(S0, 4), vr(d, 4)))
        a("%s %s, %s, %s, %s" % (MFMA, vr(d + 4, 4), vr(AI, 4), vr(C0, 4), vr(d + 4, 4)))
        a("%s %s, %s, %s, %s" % (MFMA, vr(d + 8, 4), vr(AI, 4), vr(S1, 4), vr(d + 8, 4)))
        a("%s %s, %s, %s, %s" % (MFMA, vr(d + 12, 4), vr(AI, 4), vr(NC1, 4), vr(d + 12, 4)))
    E = XO
    k = 0
    for tau in range(2):
        for r in range(3):
            for rho in range(4):
                d = D2 + 16 * rho + 8 * tau + r
                a("v_cvt_pk_bf16_f32 %s, %s, %s" % (vr(E + 4 * k + rho), vr(d), vr(d + 4)))
            a("ds_write_b128 v78, %s offset:%d" % (vr(E + 4 * k, 4), 2304 * r + 256 * tau))
            k += 1
    stamp(a, 4)
    a("s_waitcnt lgkmcnt(0)\n s_barrier")
    stamp(a, 5)
    a("s_cmp_gt_u32 s3, 5\n s_cbranch_scc1 A1_done\n s_cmp_eq_u32 s3, 5\n s_cbranch_scc1 A1_bd")
    XB = 116; D3 = 156
    for th in range(4):
        for ks in range(2):
            a("ds_read_b128 %s, %s offset:%d" % (vr(XB + 8 * th + 4 * ks, 4), vr(XA + th), 4 * A1_WS * ks))
    for th in range(4):
        a("s_waitcnt lgkmcnt(%d)" % (6 - 2 * th))
        for nu in range(2):
            d = D3 + 8 * th + 4 * nu
            a("%s %s, %s, %s, 0" % (MFMA, vr(d, 4), vr(F3 + 8 * nu, 4), vr(XB + 8 * th, 4)))
        for nu in range(2):
            d = D3 + 8 * th + 4 * nu
            a("%s %s, %s, %s, %s" % (MFMA, vr(d, 4), vr(F3 + 8 * nu + 4, 4), vr(XB + 8 * th + 4, 4), vr(d, 4)))
    O = XO
    for r in range(4):
        for nu in range(2):
            d = D3 + 4 * nu + r
            a("v_cvt_pk_bf16_f32 %s, %s, %s" % (vr(O + 4 * r + 2 * nu), vr(d), vr(d + 8)))
            a("v_cvt_pk_bf16_f32 %s, %s, %s" % (vr(O + 4 * r + 2 * nu + 1), vr(d + 16), vr(d + 24)))
        a("buffer_store_dwordx4 %s, v79, %s, s%d offen %s" % (vr(O + 4 * r, 4), sr(SWS, 4), 34 + r, SC))
    a("s_branch A1_done")
    a.label("A1_bd")
    for ks in range(2):
        a("ds_read_b128 %s, %s offset:%d" % (vr(XB + 4 * ks, 4), vr(XA), 4 * A1_WS * ks))
    a("v_lshlrev_b32 v79, 4, v1\n s_lshl_b32 s34, s28, 9\n s_add_u32 s34, s34, %d\n s_waitcnt lgkmcnt(0)" % BD_OFF)
    for nu in range(2):
        a("%s %s, %s, %s, 0" % (MFMA, vr(D3 + 4 * nu, 4), vr(XB, 4), vr(F3 + 8 * nu, 4)))
    for nu in range(2):
        a("%s %s, %s, %s, %s" % (MFMA, vr(D3 + 4 * nu, 4), vr(XB + 4, 4), vr(F3 + 8 * nu + 4, 4), vr(D3 + 4 * nu, 4)))
    for r in range(4):
        a("v_cvt_pk_bf16_f32 %s, %s, %s" % (vr(O + r), vr(D3 + r), vr(D3 + 4 + r)))
    a("s_mov_b32 exec_hi, 0")
    a("buffer_store_dwordx4 %s, v79, %s, s34 offen %s" % (vr(O, 4), sr(SWS, 4), SC))
    a("s_mov_b64 exec, -1")
    a.label("A1_done")
    stamp(a, 6)
    nonce_issue(a)
    CF = 16
    a("""
    s_mul_i32 s29, s28, 205
    s_lshr_b32 s29, s29, 10               ; k1
    s_mul_i32 s30, s29, 5
    s_sub_u32 s30, s28, s30               ; c
    s_lshl_b32 s35, s3, 4
    v_add_u32 v5, s35, v2                 ; k2 (A operand row)
    v_cvt_f32_u32 v6, v5
    v_mul_f32 v6, %s, v6
    v_lshrrev_b32 v7, 1, v3
    v_lshlrev_b32 v7, 3, v7
    v_and_b32 v8, 1, v3
    v_lshl_add_u32 v7, v8, 1, v7          ; 8(g>>1)+2(g&1)
    v_cvt_f32_u32 v8, v7
    """ % f32(1.0 / 128))
    def cfgen(ks):
        for i in range(4):
            off = 16 * ks + 4 * (i >> 1) + (i & 1)
            a("v_add_f32 v9, %s, v8" % f32(float(off)))
            a("v_mul_f32 v9, v9, v6")
            a("v_cos_f32 %s, v9\n v_sin_f32 %s, v9" % (vr(32 + i), vr(36 + i)))
        for i in range(4):
            a("v_cvt_pk_bf16_f32 %s, %s, %s" % (vr(CF + 4 * ks + i), vr(32 + i), vr(36 + i)))
    cfgen(0)
    a("s_waitcnt vmcnt(0) lgkmcnt(0)")
    stamp(a, 7)
    a("s_mov_b32 s44, %d" % (FL_OFF + 16384))
    a("s_cmp_ge_u32 s28, 64\n s_cbranch_scc1 A_nobar\n s_barrier")
    a.label("A_nobar")
    a("s_cmp_lg_u32 s3, 7\n s_cbranch_scc1 A_nopost")
    nonce_get(a, 4, 83)
    a("s_cmp_ge_u32 s28, 64\n s_cbranch_scc1 A_nopost")
    a("s_lshl_b32 s36, s28, %d\n s_add_u32 s36, s36, s44" % AFL)
    post(a, 4, 83, "s36")
    a.label("A_nopost")
    stamp(a, 8)
    cfgen(1); cfgen(2); cfgen(3)
    TA = 40
    a("""
    v_and_b32 v9, 1, v5
    v_lshlrev_b32 v9, 31, v9
    v_or_b32 v9, 0x3f803f80, v9
    v_cmp_gt_u32 vcc, 16, v1
    v_cndmask_b32 v16, v16, v9, vcc
    v_lshlrev_b32 v44, 2, v7
    v_add_u32 v44, %d, v44                ; boundary read addr
    v_lshrrev_b32 v8, 3, v2               ; r'>>1
    v_add_u32 v7, v7, v8                  ; gamma (lane part)
    v_and_b32 v9, 3, v7
    v_lshlrev_b32 v7, 8, v7
    v_lshl_add_u32 v7, v9, 6, v7
    v_and_b32 v8, 3, v2
    v_lshl_add_u32 v7, v8, 4, v7
    v_lshrrev_b32 v8, 2, v2
    v_and_b32 v8, 1, v8
    v_lshl_add_u32 v7, v8, 3, v7
    v_add_u32 v40, %d, v7
    v_xor_b32 v41, 64, v40
    v_xor_b32 v42, 0x80, v40
    v_xor_b32 v43, 0xc0, v40
    s_lshl_b32 s36, s3, 8
    s_add_u32 s36, s36, s29               ; k1 + 256 w
    v_lshl_add_u32 v5, v3, 6, s36         ; t (r=0)
    v_mul_u32_u24 v13, 2560, v5
    v_lshl_add_u32 v13, v2, 3, v13
    s_lshl_b32 s37, s30, 7                ; 128c  (direct soffset r=0)
    s_add_u32 s38, s37, 40960
    s_add_u32 s39, s38, 40960
    s_add_u32 s40, s39, 40960
    s_sub_u32 s41, 1272, s37
    v_lshlrev_b32 v8, 3, v2
    v_sub_u32 v8, s41, v8                 ; col byte of mirror
    v_sub_u32 v6, 2048, v5
    v_and_b32 v7, 2047, v6
    v_mul_u32_u24 v14, 2560, v7
    v_add_u32 v14, v14, v8                ; mirror r=0
    v_subrev_u32 v6, 48, v6
    v_mul_u32_u24 v15, 2560, v6
    v_add_u32 v15, v15, v8                ; mirror r=3
    s_mov_b32 s42, 40960
    s_mov_b32 s43, 81920
    s_lshl_b32 s31, s28, 14
    s_lshl_b32 s32, s3, 11
    s_add_u32 s31, s31, s32
    s_add_u32 s31, s31, %d
    s_add_u32 m0, s32, %d
    v_lshlrev_b32 v10, 4, v1
    v_lshlrev_b32 v11, AFL_, v1
    v_lshlrev_b32 v12, 9, v1
    s_lshr_b32 s33, s30, 2
    s_lshl_b32 s33, s33, 8
    s_lshl_b32 s34, s29, 4
    s_add_u32 s33, s33, s34
    s_and_b32 s34, s30, 3
    s_lshl_b32 s34, s34, 2
    s_add_u32 s33, s33, s34
    s_add_u32 s33, s33, %d
    """.replace("AFL_", str(AFL)) % (A2_LDS + 16384, A2_LDS, V_OFF, A2_LDS, BD_OFF))
    stamp(a, 9)
    a("s_cmp_lg_u32 s3, 7\n s_cbranch_scc1 A_nopoll")
    poll(a, 4, 11, "s44", 0, ASL)
    a.label("A_nopoll")
    a("s_barrier")
    stamp(a, 10)
    a("buffer_load_dwordx4 v10, %s, s31 offen %s lds" % (sr(SWS, 4), SC))
    a("buffer_load_dwordx4 v10, %s, s31 offen offset:1024 %s lds" % (sr(SWS, 4), SC))
    a("s_cmp_lg_u32 s3, 7\n s_cbranch_scc1 A2_no3\n s_mov_b32 m0, %d" % (A2_LDS + 16384))
    a("buffer_load_dword v12, %s, s33 offen %s lds" % (sr(SWS, 4), SC))
    a.label("A2_no3")
    a("s_waitcnt vmcnt(0)")
    stamp(a, 11)
    a("s_barrier")
    stamp(a, 12)
    X = 48; D = 128
    def rd(ks):
        for tau in range(4):
            for u in range(2):
                a("ds_read_b64_tr_b16 %s, %s offset:%d" % (vr(X + 20 * ks + 4 * tau + 2 * u, 2), vr(TA + tau), 256 * (16 * ks + 4 * u)))
        for u in range(2):
            a("ds_read_b64 %s, v44 offset:%d" % (vr(X + 20 * ks + 16 + 2 * u, 2), 64 * ks + 16 * u))
    rd(0)
    for ks in range(4):
        if ks < 3:
            a("s_waitcnt lgkmcnt(5)")
            rd(ks + 1)
            a("s_waitcnt lgkmcnt(10)")
        else: a("s_waitcnt lgkmcnt(0)")
        for tau in (0, 4, 1, 2, 3):
            d = vr(D + 4 * tau, 4)
            a("%s %s, %s, %s, %s" % (MFMA, d, vr(CF + 4 * ks, 4), vr(X + 20 * ks + 4 * tau, 4), "0" if ks == 0 else d))
    O = 48
    stamp(a, 13)
    for r in range(4):
        a("v_mov_b32_dpp %s, %s row_shl:1 row_mask:0xf bank_mask:0xf" % (vr(D + 16 + r), vr(D + r)))
    for r in range(4):
        o = O + 4 * r
        a("v_cvt_pk_bf16_f32 %s, %s, %s" % (vr(o), vr(D + r), vr(D + 4 + r)))
        a("v_cvt_pk_bf16_f32 %s, %s, %s" % (vr(o + 1), vr(D + 8 + r), vr(D + 12 + r)))
        a("buffer_store_dwordx2 %s, v13, %s, s%d offen %s" % (vr(o, 2), sr(SO, 4), 37 + r, AO))
        a("v_cvt_pk_bf16_f32 %s, %s, %s" % (vr(o + 2), vr(D + 16 + r), vr(D + 12 + r)))
        a("v_cvt_pk_bf16_f32 %s, %s, %s" % (vr(o + 3), vr(D + 8 + r), vr(D + 4 + r)))
        if r == 0: a("buffer_store_dwordx2 %s, v14, %s, 0 offen %s" % (vr(o + 2, 2), sr(SO, 4), AO))
        else: a("buffer_store_dwordx2 %s, v15, %s, %s offen %s" % (vr(o + 2, 2), sr(SO, 4), ("s43", "s42", "0")[r - 1], AO))
    stamp(a, 14)
    endp(a, [(11, 3), (12, 5), (13, 8), (14, 10), (15, 15)])
    return 220

KVB = 64
KS = 4608
HB = KVB + 4 * KS
CS = 4160
YB = HB + 16 * CS
B_LDS = YB + 33 * 1040
YT_OFF = QT_OFF
def role_b(a):
    SK, SV, SH, SSH = 24, 52, 56, 4
    SQ = SK
    a("""
    s_mul_i32 s31, s29, 163840
    s_lshl_b32 s32, s30, 7
    s_add_u32 s31, s31, s32               ; tile base
    s_mul_i32 s32, s3, 20480
    s_add_u32 s32, s32, s31               ; wave's first block
    s_add_u32 s33, s32, 10240
    v_lshrrev_b32 v2, 3, v1
    v_mul_u32_u24 v4, 1280, v2
    v_and_b32 v3, 7, v1
    v_lshl_add_u32 v4, v3, 4, v4
    s_mul_i32 s34, s3, 2080
    s_add_u32 m0, s34, %d
    s_mov_b32 s26, 2621440
    s_mov_b32 s27, 0x00020000
    s_mov_b32 s54, 2621440
    s_mov_b32 s55, 0x00020000
    v_and_b32 v5, 3, v2                   ; ipl
    s_lshl_b32 s35, s3, 2
    v_add_u32 v5, s35, v5                 ; ip
    v_lshrrev_b32 v6, 5, v1
    v_lshl_add_u32 v6, v6, 3, v3          ; tb
    v_lshlrev_b32 v7, 4, v5
    s_waitcnt lgkmcnt(0)
    s_mov_b32 s24, s42
    s_and_b32 s25, s43, 0xffff
    """ % (YB + 1040))
    a("buffer_load_dwordx4 v4, %s, s32 offen %s lds" % (sr(SK, 4), NT))
    a("s_add_u32 m0, m0, 1040\n s_mov_b32 s52, s44")
    a("buffer_load_dwordx4 v4, %s, s33 offen %s lds" % (sr(SK, 4), NT))
    a("s_add_u32 m0, m0, %d\n s_and_b32 s53, s45, 0xffff" % (15 * 1040))
    a("buffer_load_dwordx4 v4, %s, s32 offen %s lds" % (sr(SV, 4), NT))
    a("s_add_u32 m0, m0, 1040\n s_cmp_lg_u32 s3, 3")
    a("buffer_load_dwordx4 v4, %s, s33 offen %s lds" % (sr(SV, 4), NT))
    a("""
    s_cbranch_scc1 B1_nohalo
    s_mov_b32 m0, %d
    s_sub_u32 s35, s31, 10240
    v_add_u32 v8, s35, v4
    """ % YB)
    a("buffer_load_dwordx4 v8, %s, 0 offen %s lds" % (sr(SK, 4), NT))
    a.label("B1_nohalo")
    if opt('wm', 6) == 7:
        a("s_lshl_b32 s32, s30, 4\n s_add_u32 s32, s32, s29\n s_lshl_b32 s32, s32, 3\n s_add_u32 s32, s32, s3\n s_lshl_b32 s32, s32, 11\n s_add_u32 s32, s6, s32\n s_addc_u32 s33, s7, 0")
        for i in range(16): a("s_load_dword s61, s[32:33], %d" % (128 * i))
    common_srds(a)
    a.srd(SSH, 46, 5120)
    SHR = 8
    a("s_lshl_b32 s35, s30, 9")
    a("buffer_load_dwordx4 %s, v7, %s, s35 offen %s" % (vr(SHR, 4), sr(SSH, 4), POL[opt('shp', 1)]))
    a("""
    s_lshl_b32 s28, s30, 4
    s_add_u32 s28, s28, s29               ; Q
    s_lshl_b32 s36, s28, 14               ; Q*16384
    v_lshlrev_b32 v14, 4, v1              ; lane*16
    s_lshl_b32 s32, s28, 3
    s_and_b32 s37, s3, 2
    s_lshl_b32 s37, s37, 1
    s_add_u32 s32, s32, s37
    s_load_dword s37, s[50:51], s32
    s_lshl_b32 s34, s30, 10
    s_add_u32 s34, s34, %d                ; cluster flag base
    s_and_b32 s33, s3, 3                  ; channel
    s_lshl_b32 s43, s33, 12
    s_add_u32 s43, s43, s36               ; channel row offset (h, kvT, yT)
    s_mul_i32 s42, s33, %d
    s_add_u32 s42, s42, %d                ; copy0 base of this channel
    s_mul_i32 s44, s33, %d
    s_add_u32 s44, s44, %d                ; kv data base of this channel
    v_mul_u32_u24 v12, 1040, v6
    v_lshl_add_u32 v12, v5, 2, v12
    v_add_u32 v12, %d, v12                ; staging read addr
    v_lshlrev_b32 v13, 13, v5
    v_lshl_add_u32 v13, v6, 4, v13        ; kvT store voffset
    s_lshl_b32 s38, s30, 18
    s_lshl_b32 s39, s29, 8
    s_add_u32 s38, s38, s39
    s_add_u32 s39, s38, 4096
    s_mov_b32 s35, 0xffff0000
    v_mov_b32 v24, 0
    v_mov_b32 v18, 0
    v_and_b32 v2, 15, v1
    v_lshrrev_b32 v3, 4, v1
    """ % (FL_OFF, 4 * CS, HB, KS, KVB + 512, YB))
    a.srd(SH, 48, 2621440)
    if opt('fe', 2) == 1:
        a("s_cmp_lg_u32 s3, 0\n s_cbranch_scc1 B1_nofw\n s_mov_b32 exec_hi, 0")
        a("buffer_load_dword v204, v14, %s, s34 offen %s" % (sr(SWS, 4), POL[opt('pwf', 0)]))
        a("s_mov_b64 exec, -1")
        a.label("B1_nofw")
    if opt('wm', 6) in (13, 14):
        a("s_cmp_%s_u32 s3, 4\n s_cbranch_scc1 B1_now" % ("lt" if opt('wm', 6) == 13 else "ge"))
        a("v_lshlrev_b32 v204, 7, v1\n s_mov_b32 exec_hi, 0")
        a("buffer_load_dword v200, v204, %s, s43 offen %s" % (sr(SWS, 4), PW1))
        a("s_mov_b64 exec, 15")
        a("buffer_load_dword v201, v204, %s, s34 offen" % sr(SWS, 4))
        a("s_mov_b64 exec, -1")
        a.label("B1_now")
    if opt('pc', 0) == 1:
        for i in range(2): a("buffer_store_dwordx4 v[208:211], v13, %s, s%d offen" % (sr(SWS, 4), 38 + i))
    if opt('b0', 1): a("s_barrier")
    if opt('pc', 0) == 2:
        for i in range(2): a("buffer_store_dwordx4 v[208:211], v13, %s, s%d offen" % (sr(SWS, 4), 38 + i))
    if opt('wm', 6) == 10:
        for i in range(2): a("buffer_store_dwordx4 v[200:203], v13, %s, s%d offen sc1" % (sr(SWS, 4), 38 + i))
    a("s_cmp_ge_u32 s3, 4\n s_cbranch_scc1 B1_noh\n s_add_u32 m0, s42, 32")
    if opt('hw', -1) >= 0: a("s_waitcnt vmcnt(%d)" % opt('hw', -1))
    if opt('wm', 6) == 8:
        a("v_lshlrev_b32 v204, 7, v1\n s_mov_b32 exec_hi, 0")
        a("buffer_load_dword v200, v204, %s, s43 offen %s" % (sr(SWS, 4), PW1))
        a("s_mov_b64 exec, -1")
    for i in range(4):
        a("buffer_load_dwordx4 v14, %s, s43 offen offset:%d %s lds" % (sr(SH, 4), 1024 * i, NT))
    for i in range(4 if opt('wm', 6) == 2 else 0):
        a("buffer_load_dwordx4 v[200:203], v14, %s, s43 offen offset:%d %s" % (sr(SWS, 4), 1024 * i, PW1))
    def nwarm(sh):
        a("v_lshlrev_b32 v204, %d, v1" % sh)
        if sh == 7: a("s_mov_b32 exec_hi, 0")
        HY = opt('hy', 802)
        if HY:
            a("s_bitcmp1_b32 %d, s30\n s_cbranch_scc1 B1_hy1" % HY if False else "s_mov_b32 s32, %d\n s_bitcmp1_b32 s32, s30\n s_cbranch_scc1 B1_hy1" % HY)
            a("buffer_load_dword v200, v204, %s, s43 offen nt" % sr(SWS, 4))
            a("s_branch B1_hy2")
            a.label("B1_hy1")
        a("buffer_load_dword v200, v204, %s, s43 offen %s" % (sr(SWS, 4), PW1))
        if HY: a.label("B1_hy2")
        if sh == 7: a("s_mov_b64 exec, -1")
    if opt('wm', 6) in (3, 4): nwarm(3 + opt('wm', 6))
    a.label("B1_noh")
    stamp(a, 1)
    a.srd(SQ, 40, 2621440)
    a("""
    v_lshrrev_b32 v5, 3, v0               ; s
    v_and_b32 v6, 7, v1                   ; o
    v_mul_u32_u24 v20, 2080, v6
    v_lshl_add_u32 v20, v5, 2, v20
    v_add_u32 v20, %d, v20                ; y image read addr
    v_and_b32 v7, 1, v5
    v_lshlrev_b32 v7, 1, v7               ; 2rp
    v_bfe_u32 v15, v5, 1, 1
    v_lshl_add_u32 v7, v15, 8, v7         ; +256u
    v_bfe_u32 v15, v5, 2, 2
    v_lshl_add_u32 v7, v15, 4, v7         ; +16cc
    v_lshrrev_b32 v15, 4, v5
    v_lshl_add_u32 v7, v15, 2, v7         ; +4g
    v_mul_u32_u24 v21, 1280, v7
    v_lshl_add_u32 v21, v6, 4, v21        ; q voffset
    v_mul_u32_u24 v22, 2560, v7
    v_lshl_add_u32 v22, v6, 4, v22        ; out voffset
    s_lshr_b32 s45, s29, 2
    s_lshl_b32 s45, s45, 3
    s_and_b32 s46, s29, 3
    s_add_u32 s45, s45, s46
    s_mul_i32 s45, s45, 81920             ; (512i+64j)*1280
    s_lshl_b32 s46, s30, 7
    s_lshl_b32 s47, s45, 1
    s_add_u32 s45, s45, s46               ; q soffset
    s_add_u32 s47, s47, s46
    s_add_u32 s47, s47, 1280              ; out soffset
    v_lshlrev_b32 v23, 12, v3
    v_lshl_add_u32 v23, v2, 4, v23        ; piece gather voffset (4 channels x 256B)
    s_cmp_lt_u32 s3, 4
    s_cbranch_scc1 B1_m
    s_waitcnt vmcnt(%d)
    """ % (YB, 2 if opt('wm', 6) == 13 else 0))
    WM = opt('wm', 6)
    for i in range(4 if WM == 0 else 0):
        a("buffer_load_dwordx4 v[200:203], v14, %s, s43 offen offset:%d %s" % (sr(SWS, 4), 1024 * i, PW1))
    if opt('tw', 0):
        for i in range(4):
            a("buffer_load_dwordx4 v[200:203], v14, %s, s43 offen offset:%d sc1" % (sr(SWS, 4), 1024 * i))
    if not opt('fe', 2): a("buffer_load_dword v204, v14, %s, s34 offen %s" % (sr(SWS, 4), POL[opt('pwf', 0)]))
    tlb_touch(a, 7, 205, 206, SQ)
    if opt('prio', 0): a("s_setprio 1")
    a("s_branch B1_w")
    a.label("B1_m")
    if opt('prio', 0) == 2: a("s_setprio 1")
    AD = 52
    a("""
    v_mov_b32 v25, 0
    v_mov_b32 v26, 0
    v_mov_b32 v27, 0
    ; zero pads of this channel: lanes 0..31 kv pad, lanes 32..39 h pads
    v_subrev_u32 v5, 512, v14
    v_add_u32 v5, s44, v5
    v_subrev_u32 v6, 32, v1
    v_lshrrev_b32 v7, 1, v6
    v_mul_u32_u24 v7, %d, v7
    v_and_b32 v6, 1, v6
    v_lshl_add_u32 v7, v6, 4, v7
    v_add_u32 v7, s42, v7
    v_cmp_gt_u32 vcc, 32, v1
    s_mov_b32 exec_hi, 0xff
    v_cndmask_b32 v5, v7, v5, vcc
    ds_write_b128 v5, v[24:27]
    s_mov_b64 exec, 3
    ds_write_b128 v14, v[24:27]           ; sync words 0..31
    s_mov_b64 exec, -1
    ; fragment addresses
    v_lshl_add_u32 v18, v3, 3, v2
    v_add_u32 v5, 1, v18                  ; z0
    v_sub_u32 v19, 0, v5
    v_and_b32 v19, 3, v19                 ; c'
    v_add_u32 v5, v5, v19
    v_mul_u32_u24 v19, %d, v19
    v_lshl_add_u32 v16, v5, 1, v19
    v_add_u32 v16, s42, v16               ; A addr
    v_lshlrev_b32 v17, 5, v2
    v_lshlrev_b32 v5, 4, v3
    v_sub_u32 v17, v17, v5
    s_add_u32 s32, s44, 16
    v_add_u32 v17, s32, v17               ; F addr
    v_sub_u32 v6, 15, v18                 ; idx
    v_and_b32 v7, 1, v6
    v_lshlrev_b32 v7, 4, v7
    v_ashrrev_i32 v6, 1, v6
    v_lshrrev_b32 v5, 2, v2
    v_lshlrev_b32 v5, 8, v5
    v_lshl_add_u32 v5, v3, 6, v5
    v_and_b32 v19, 3, v2
    v_lshl_add_u32 v18, v19, 4, v5        ; y store voffset
    v_add_u32 v19, s42, v14               ; h copy addr
    s_waitcnt lgkmcnt(0)
    v_mov_b32 v25, 1
    s_lshl_b32 s32, s3, 2
    v_mov_b32 v26, s32
    s_lshr_b32 s32, s37, 16
    s_and_b32 s37, s37, 0xffff
    s_bitcmp1_b32 s3, 0
    s_cselect_b32 s37, s32, s37           ; D bits
    v_lshlrev_b32 v7, v7, s37
    """ % (CS, CS))
    for i in range(4):
        a("v_cmp_eq_u32 vcc, %d, v6\n v_cndmask_b32 %s, v24, v7, vcc" % (i, vr(188 + i)))
    a("s_mov_b32 m0, s44\n s_waitcnt vmcnt(%d)" % (8 if WM == 2 else 5 if WM in (3, 4, 8) else 6 if WM == 14 else 4))
    if WM in (5, 6): nwarm(1 + WM)
    if opt('fe', 2) == 2 and WM < 13:
        a("s_mov_b64 exec, 15")
        a("buffer_load_dword v201, v204, %s, s34 offen" % sr(SWS, 4))
        a("s_mov_b64 exec, -1")
    for i in range(4 if WM == 1 else 0):
        a("buffer_load_dwordx4 v[200:203], v14, %s, s43 offen offset:%d %s" % (sr(SWS, 4), 1024 * i, PW1))
    a.label("B1_w")
    W = 28
    def wunpack():
        for ch in range(2):
            for i in range(4):
                src = SHR + 2 * ch + (i >> 1)
                if i & 1: a("v_and_b32 %s, s35, %s" % (vr(W + 2 * i + ch), vr(src)))
                else: a("v_lshlrev_b32 %s, 16, %s" % (vr(W + 2 * i + ch), vr(src)))
    if opt('hoist', 1): wunpack()
    stamp(a, 3)
    a("s_barrier")
    stamp(a, 4)
    W = 28; KR = 36; VR = 48; KF = 56; VF = 80; KV = 96; O = 112
    for j in range(11):
        off = 640 + 128 * j if j < 3 else 1040 + 128 * (j - 3)
        a("ds_read_b32 %s, v12 offset:%d" % (vr(KR + j), off))
    if not opt('hoist', 1): wunpack()
    a("s_waitcnt lgkmcnt(4)")
    for j in range(8):
        a("ds_read_b32 %s, v12 offset:%d" % (vr(VR + j), 17680 + 128 * j))
    def unpack(dst, src):
        a("v_lshlrev_b32 %s, 16, %s" % (vr(dst), vr(src)))
        a("v_and_b32 %s, s35, %s" % (vr(dst + 1), vr(src)))
    for j in range(11):
        if j == 7: a("s_waitcnt lgkmcnt(8)")
        unpack(KF + 2 * j, KR + j)
    for t in range(8):
        d = vr(KV + 2 * t, 2)
        a("v_pk_mul_f32 %s, %s, %s" % (d, vr(W + 6, 2), vr(KF + 2 * t, 2)))
    for i in (2, 1, 0):
        for t in range(8):
            d = vr(KV + 2 * t, 2)
            a("v_pk_fma_f32 %s, %s, %s, %s" % (d, vr(W + 2 * i, 2), vr(KF + 2 * (t + 3 - i), 2), d))
    a("s_waitcnt lgkmcnt(0)")
    nonce_issue(a)
    for j in range(8):
        unpack(VF + 2 * j, VR + j)
    for t in range(8):
        d = vr(KV + 2 * t, 2)
        a("v_pk_mul_f32 %s, %s, %s" % (d, d, vr(VF + 2 * t, 2)))
    for ch in range(2):
        for i in range(4):
            a("v_cvt_pk_bf16_f32 %s, %s, %s" % (vr(O + 4 * ch + i), vr(KV + 2 * (7 - 2 * i) + ch), vr(KV + 2 * (6 - 2 * i) + ch)))
        a("buffer_store_dwordx4 %s, v13, %s, s%d offen %s" % (vr(O + 4 * ch, 4), sr(SWS, 4), 38 + ch, MB))
    stamp(a, 5)
    AD = 188
    QR = 176
    ACC = 192
    SET = [48, 112]
    def ldA(s, aa):
        return ["ds_read_b64 %s, v16 offset:%d" % (vr(SET[s] + 4 * aa, 2), 512 * aa),
                "ds_read_b64 %s, v16 offset:%d" % (vr(SET[s] + 4 * aa + 2, 2), 512 * aa + 8)]
    def ldF(s, b):
        return ["ds_read_b128 %s, v17 offset:%d" % (vr(SET[s] + 32 + 4 * b, 4), 512 * b)]
    def loads(s, idx):
        L = []
        for i in idx: L += ldF(s, i) + ldA(s, i)
        return L
    adv = ["v_add_u32 v16, 64, v16", "v_subrev_u32 v17, 64, v17"]
    def mf(s, n, aa):
        d = vr(ACC + 4 * n, 4)
        return "%s %s, %s, %s, %s" % (MFMA, d, vr(SET[s] + 4 * aa, 4), vr(SET[s] + 32 + 4 * (n - aa), 4), d)
    a("s_cmp_ge_u32 s3, 4\n s_cbranch_scc1 B_help")
    if opt('prio', 0) == 2: a("s_setprio 0")
    a("s_waitcnt vmcnt(%d)" % (2 if WM in (7, 8, 9, 10, 11, 12, 13, 14) else (4 if opt('fe', 2) == 2 else 3) if WM >= 3 else 6 if WM else 2))
    if opt('st1', 0):
        stamp(a, 1)
        a("s_waitcnt vmcnt(2)")
        stamp(a, 0)
    HR = 28
    for i in range(4):
        a("ds_read_b64 %s, v19 offset:%d" % (vr(HR + 6 * i, 2), 1024 * i + 24))
        a("ds_read_b128 %s, v19 offset:%d" % (vr(HR + 6 * i + 2, 4), 1024 * i + 32))
    for i in range(4):
        d = HR + 6 * i + 2
        c = 56 + 12 * i
        if i == 0: a("s_waitcnt lgkmcnt(6)")
        if i == 1: a("s_waitcnt lgkmcnt(3)")
        for j in range(4): a("v_alignbit_b32 %s, %s, %s, 16" % (vr(c + j), vr(d + j), vr(d + j - 1)))
        a("ds_write_b128 v19, %s offset:%d" % (vr(c, 4), CS + 1024 * i + 32))
        for j in range(4): a("v_mov_b32 %s, %s" % (vr(c + 4 + j), vr(d + j - 1)))
        a("ds_write_b128 v19, %s offset:%d" % (vr(c + 4, 4), 2 * CS + 1024 * i + 32))
        for j in range(4): a("v_alignbit_b32 %s, %s, %s, 16" % (vr(c + 8 + j), vr(d + j - 1), vr(d + j - 2)))
        a("ds_write_b128 v19, %s offset:%d" % (vr(c + 8, 4), 3 * CS + 1024 * i + 32))
        if i == HSPLIT:
            a("s_waitcnt vmcnt(0)")
            stamp(a, 6)
            a("s_barrier")
            stamp(a, 7)
    a("s_waitcnt lgkmcnt(0)")
    LA = sum([ldA(0, i) for i in range(8)], [])
    for x in LA[:12]: a(x)
    a("s_waitcnt lgkmcnt(8)")
    for x in LA[12:]: a(x)
    gsrc = """
    s_lshl_b32 s38, s30, 18
    s_lshl_b32 s39, s29, 8
    s_add_u32 s38, s38, s39
    s_lshl_b32 s39, s3, 15
    s_add_u32 s38, s38, s39               ; gather source
    s_mul_i32 s39, s3, 2080
    s_add_u32 s39, s39, %d
    v_add_u32 v19, s39, v14               ; image write addr
    """ % YB
    a(gsrc)
    stamp(a, 8)
    a("s_barrier")
    stamp(a, 9)
    for i in range(4):
        a("buffer_load_dwordx4 v14, %s, s43 offen offset:%d %s lds" % (sr(SWS, 4), 1024 * i, SC))
    a("ds_read_b32 v4, v24\n s_waitcnt lgkmcnt(0)\n v_readfirstlane_b32 s48, v4\n s_cmp_eq_u32 s48, 0\n s_cbranch_scc1 B_fast1")
    a("s_add_u32 s32, s43, %d\n s_waitcnt vmcnt(0)" % S_DELTA)
    for i in range(4):
        a("buffer_load_dwordx4 v14, %s, s32 offen offset:%d %s lds" % (sr(SWS, 4), 1024 * i, SC))
    a.label("B_fast1")
    PROG = opt('prog', 1)
    def mfD(n): return "%s %s, %s, %s, 0" % (MFMA, vr(ACC + 4 * n, 4), vr(AD, 4), vr(SET[0] + 32 + 4 * n, 4))
    def qldm(i): return "buffer_load_dwordx4 %s, v21, %s, s45 offen offset:%d %s" % (vr(QR + 4 * i, 4), sr(SQ, 4), 1280 * i, NT)
    if not PROG:
        for i in range(4):
            a("s_waitcnt vmcnt(%d)" % (3 - i))
            if i == 0: stamp(a, 10)
            for b in (2 * i, 2 * i + 1):
                for x in ldF(0, b): a(x)
        a("ds_write_b32 v26, v25 offset:16")
        for x in adv: a(x)
        for n in range(8):
            if n in (0, 2, 4, 6): a("s_waitcnt lgkmcnt(%d)" % (7 - n))
            a(mfD(n))
            if n >= 6: a(qldm(n - 6))
    else:
        def tiles(n0): return sum([[mfD(n)] + [mf(0, n, aa) for aa in range(n + 1)] for n in (n0, n0 + 1)], [])
        a("s_waitcnt vmcnt(3)")
        stamp(a, 10)
        for x in ldF(0, 0) + ldF(0, 1): a(x)
        a("s_waitcnt vmcnt(2)")
        for x in ldF(0, 2) + ldF(0, 3): a(x)
        a("s_waitcnt lgkmcnt(2)")
        T0 = tiles(0)
        for x in T0[:2]: a(x)
        a("s_waitcnt vmcnt(1)")
        for x in ldF(0, 4) + ldF(0, 5): a(x)
        for x in T0[2:]: a(x)
        a("s_waitcnt lgkmcnt(2)")
        T2 = tiles(2)
        for x in T2[:2]: a(x)
        a("s_waitcnt vmcnt(0)")
        for x in ldF(0, 6) + ldF(0, 7): a(x)
        a(T2[2]); a("ds_write_b32 v26, v25 offset:16"); a(T2[3]); a(adv[0]); a(T2[4]); a(adv[1])
        for x in T2[5:]: a(x)
        a("s_waitcnt lgkmcnt(0)")
        L = loads(1, range(8)) + adv + [qldm(0), qldm(1)]
        for k, x in enumerate(tiles(4) + tiles(6)):
            a(x)
            if k < len(L): a(L[k])
        a("s_waitcnt lgkmcnt(0)")
    stamp(a, 11)
    if opt('cyc', 0): a("s_memtime s[74:75]")
    QF = 28
    def unq():
        L = []
        for i in range(8):
            L.append("v_lshlrev_b32 %s, 16, %s" % (vr(QF + 2 * i), vr(QR + i)))
            L.append("v_and_b32 %s, s35, %s" % (vr(QF + 2 * i + 1), vr(QR + i)))
        return L
    G = [(n, aa) for n in range(8) for aa in range(n + 1)]
    YO = SET[0]
    def ycvt(i):
        L = []
        for u in range(2):
            d = ACC + 4 * (2 * i + u)
            L.append("v_cvt_pk_bf16_f32 %s, %s, %s" % (vr(YO + 4 * i + 2 * u), vr(d), vr(d + 1)))
            L.append("v_cvt_pk_bf16_f32 %s, %s, %s" % (vr(YO + 4 * i + 2 * u + 1), vr(d + 2), vr(d + 3)))
        return L
    def yst(i, pol): return "buffer_store_dwordx4 %s, v18, %s, s43 offen offset:%d %s" % (vr(YO + 4 * i, 4), sr(SWS, 4), 1024 * i, pol)
    a("s_mov_b32 s33, 0")
    def half(s, cnt):
        L = loads(1 - s, range(8)) + adv
        EXP = opt('exp', 0)
        if EXP == 1: L = adv
        if EXP == 2: L = [x for x in L if "b128" in x] + adv
        if EXP == 3: L = [x for x in L if "b64" in x] + adv
        for k, (n, aa) in enumerate(G):
            a(mf(s, n, aa))
            if k < len(L): a(L[k])
            if cnt and k == 30: a(cnt)
        a("s_waitcnt lgkmcnt(0)")
    if opt('ft', 1):
        if not PROG: half(0, None)
        a(".p2align 3")
        a.label("B_g")
        half(1, None)
        half(0, "s_add_u32 s33, s33, 1\n s_cmp_lt_u32 s33, 3\n ds_read_b32 v4, v24 offset:8")
        a("s_cbranch_scc1 B_g")
    else:
        a(".p2align 3")
        a.label("B_g")
        half(0, "s_add_u32 s33, s33, 1\n s_cmp_eq_u32 s33, 4")
        a("s_cbranch_scc1 B_last")
        half(1, None)
        a("s_branch B_g")
    a.label("B_last")
    if opt('cyc', 0): a("s_memtime s[78:79]")
    a("v_cmp_eq_u32 vcc, 0, v4\n s_cbranch_vccnz B_lastrare")
    a.label("B_last2")
    fill = {}
    U = unq()
    LV = opt('lv', 1)
    GL = G
    if LV == 0:
        for k in range(11): fill[k] = [U[k]]
        seq = ycvt(0) + [yst(0, MB2)] + U[11:13] + ycvt(1) + [yst(1, MB2)] + U[13:16]
        for j, x in enumerate(seq): fill[11 + j] = [x]
        for j, x in enumerate(ycvt(2) + [yst(2, MB2)]): fill[29 + j] = [x]
    elif LV in (1, 2):
        if LV == 2:
            GL = []
            for i in range(4):
                A_ = [(2 * i + 1, aa) for aa in range(2 * i + 2)]; B_ = [(2 * i, aa) for aa in range(2 * i + 1)]
                for j in range(len(A_)):
                    GL.append(A_[j])
                    if j < len(B_): GL.append(B_[j])
        for j, x in enumerate(ycvt(0) + [yst(0, MB2)] + ycvt(1) + [yst(1, MB2)]): fill[17 + j] = [x]
        for j, x in enumerate(ycvt(2) + [yst(2, MB2)]): fill[29 + j] = [x]
    fill[TBAR] = fill.get(TBAR, []) + ["ds_write_b32 v24, v25 offset:12"]
    for k, (n, aa) in enumerate(GL):
        a(mf(1, n, aa))
        for x in fill.get(k, []): a(x)
    stamp(a, 12)
    if opt('cyc', 0): a("s_memtime s[76:77]")
    if LV == 3:
        for i in range(3):
            for x in ycvt(i): a(x)
            a(yst(i, MB2))
    for x in ycvt(3): a(x)
    a(yst(3, MB2))
    a("s_waitcnt vmcnt(4)")
    for x in U: a(x)
    a("s_branch B_poll")
    a.label("B_lastrare")
    a("s_cmp_lg_u32 s48, 0\n s_cbranch_scc1 B_lastslow")
    ldswait(a, 4, 24, 8, None)
    a("s_branch B_last2")
    a.label("B_lastslow")
    for k, (n, aa) in enumerate(G): a(mf(1, n, aa))
    a("s_add_u32 s43, s43, %d\n s_waitcnt vmcnt(0)" % YT_OFF)
    for x in U: a(x)
    for i in range(4):
        for x in ycvt(i): a(x)
        a(yst(i, SC))
    a("s_branch B_slow2")
    a.label("B_help")
    a("s_cmp_lg_u32 s3, 4\n s_cbranch_scc1 B_h5\n s_waitcnt lgkmcnt(0)")
    nonce_get(a, 4, 24)
    xprep(a)
    if opt('pp', 0):
        a("buffer_load_dword v4, v11, %s, s34 offen %s" % (sr(SWS, 4), SC))
        a("s_lshl_b32 s49, 1, s29\n s_xor_b32 s49, s49, 0xffff")
    a("s_waitcnt vmcnt(0)")
    if opt('pp', 0): a("v_cmp_ne_u32 vcc, v4, v10\n s_and_b32 s49, s49, vcc_lo")
    stamp(a, 6)
    a("s_barrier")
    stamp(a, 7)
    exchange(a, 0, 23, "s38", 16384, S_DELTA)
    a("v_mov_b32 v4, s33\n ds_write_b32 v24, v4\n s_waitcnt lgkmcnt(0)")
    stamp(a, 8)
    a("s_branch B_h6")
    a.label("B_h5")
    if WM in (9, 10): a("v_lshlrev_b32 v204, 7, v1\n s_sub_u32 s32, s3, 5\n s_lshl_b32 s32, s32, 13\n s_add_u32 s32, s32, s36")
    a("s_waitcnt vmcnt(0)")
    stamp(a, 6)
    a("s_barrier")
    if WM in (9, 10):
        a("s_cmp_eq_u32 s3, 7\n s_cbranch_scc1 B_h6")
        a("buffer_load_dword v200, v204, %s, s32 offen %s" % (sr(SWS, 4), PW1))
    a.label("B_h6")
    if opt('prio', 0): a("s_setprio 0")
    a("s_barrier\n ds_read_b32 v4, v24")
    a(gsrc)
    a("s_waitcnt lgkmcnt(0)\n v_readfirstlane_b32 s48, v4\n v_and_b32 v5, 3, v1\n v_lshlrev_b32 v5, 2, v5")
    ldswait(a, 4, 5, 16, None, 1)
    def qld():
        for i in range(2):
            a("buffer_load_dwordx4 %s, v21, %s, s45 offen offset:%d %s" % (vr(QR + 4 * i, 4), sr(SQ, 4), 1280 * i, NT))
    if opt('qf', 1): qld()
    a("s_cmp_lg_u32 s48, 0\n s_cbranch_scc1 B_h7\n s_cmp_lg_u32 s3, 4\n s_cbranch_scc1 B_h7")
    a("v_mov_b32 v56, -1\n v_mov_b32 v57, -1\n v_mov_b32 v58, -1\n v_mov_b32 v59, -1\n s_mov_b32 s32, s36")
    for i in range(4):
        for j in range(4):
            a("buffer_store_dwordx4 v[56:59], v14, %s, s32 offen offset:%d" % (sr(SWS, 4), 1024 * j))
        if i < 3: a("s_add_u32 s32, s32, 4096")
    a("s_waitcnt vmcnt(0)\n s_mov_b64 exec, 1")
    a("buffer_store_dword v9, v24, %s, s63 offen offset:256" % sr(SWS, 4))
    a("s_mov_b64 exec, 0xffff\n s_mov_b32 s62, %d" % SPIN_MAX)
    a.label("B_cl")
    a("s_sleep 4")
    a("buffer_load_dword v4, v11, %s, s34 offen offset:256 %s" % (sr(SWS, 4), SC))
    a("s_sub_u32 s62, s62, 1\n s_cbranch_scc1 B_cd\n s_waitcnt vmcnt(0)\n v_cmp_ne_u32 vcc, v4, v10\n s_cbranch_vccnz B_cl")
    a.label("B_cd")
    a("s_mov_b64 exec, -1\n v_mov_b32 v4, 1\n ds_write_b32 v24, v4 offset:8")
    stamp(a, 9)
    a.label("B_h7")
    if not opt('qf', 1): qld()
    a("s_waitcnt vmcnt(0)")
    for x in unq(): a(x)
    a("s_cmp_lg_u32 s48, 0\n s_cbranch_scc1 B_slow2")
    ldswait(a, 4, 24, 12, None, opt('tsl', 2))
    a("s_branch B_poll")
    a.label("B_slow2")
    a("s_add_u32 s38, s38, %d\n s_waitcnt vmcnt(0)\n s_barrier\n s_cmp_lg_u32 s3, 4\n s_cbranch_scc1 B_s3" % YT_OFF)
    post(a, 4, 24, "s63", 384)
    a("v_lshlrev_b32 v5, 2, v2")
    poll(a, 4, 5, "s34", 384, 4)
    a.label("B_s3")
    a("s_barrier")
    a.label("B_poll")
    stamp(a, 13)
    a("s_add_u32 s46, s38, 16384\n s_cmp_eq_u32 s48, 0\n s_cselect_b32 s62, 4000, 0")
    if opt('dps', 0):
        a("s_branch B_pl0")
        a.label("B_pl")
        a("s_sleep %d" % opt('dps', 0))
        a.label("B_pl0")
    else: a.label("B_pl")
    a("buffer_load_dwordx4 v[64:67], v23, %s, s38 offen %s" % (sr(SWS, 4), SC))
    a("buffer_load_dwordx4 v[68:71], v23, %s, s46 offen %s" % (sr(SWS, 4), SC))
    a("""
    s_sub_u32 s62, s62, 1
    s_waitcnt vmcnt(1)
    v_max3_u32 v4, v64, v65, v66
    s_waitcnt vmcnt(0)
    s_cbranch_scc1 B_pd
    v_max3_u32 v4, v4, v67, v68
    v_max3_u32 v5, v69, v70, v71
    v_max_u32 v4, v4, v5
    v_cmp_eq_u32 vcc, -1, v4
    s_cbranch_vccnz B_pl
    """)
    a.label("B_pd")
    stamp(a, 14)
    a("ds_write_b128 v19, v[64:67]\n ds_write_b128 v19, v[68:71] offset:1040")
    if opt('cln', 0) == 2:
        a("buffer_store_dwordx4 v[64:67], v23, %s, s38 offen sc1" % sr(SWS, 4))
        a("buffer_store_dwordx4 v[68:71], v23, %s, s46 offen sc1" % sr(SWS, 4))
    a("s_waitcnt lgkmcnt(0)\n s_barrier")
    stamp(a, 2)
    Y = 72; YF = 80; O = 100
    for e in range(8):
        a("ds_read_b32 %s, v20 offset:%d" % (vr(Y + e), (e >> 2) * 1040 + (e & 3) * 256))
    for e in range(8):
        if e % 2 == 0: a("s_waitcnt lgkmcnt(%d)" % (6 - e))
        a("v_lshlrev_b32 %s, 16, %s" % (vr(YF + e), vr(Y + e)))
        a("v_mul_f32 %s, %s, %s" % (vr(YF + e), vr(YF + e), vr(QF + e)))
    for j in range(4):
        a("v_cvt_pk_bf16_f32 %s, %s, %s" % (vr(O + j), vr(YF + 2 * j), vr(YF + 2 * j + 1)))
    a("buffer_store_dwordx4 %s, v22, %s, s47 offen %s" % (vr(O, 4), sr(SO, 4), BO))
    for e in range(8):
        a("v_and_b32 %s, s35, %s" % (vr(YF + 8 + e), vr(Y + e)))
        a("v_mul_f32 %s, %s, %s" % (vr(YF + 8 + e), vr(YF + 8 + e), vr(QF + 8 + e)))
    for j in range(4):
        a("v_cvt_pk_bf16_f32 %s, %s, %s" % (vr(O + 4 + j), vr(YF + 8 + 2 * j), vr(YF + 8 + 2 * j + 1)))
    a("buffer_store_dwordx4 %s, v22, %s, s47 offen offset:2560 %s" % (vr(O + 4, 4), sr(SO, 4), BO))
    if opt('cln', 0) == 1:
        a("buffer_store_dwordx4 v[64:67], v23, %s, s38 offen sc1" % sr(SWS, 4))
        a("buffer_store_dwordx4 v[68:71], v23, %s, s46 offen sc1" % sr(SWS, 4))
    endp(a, [(1, -1), (2, 0), (3, 1), (4, 4), (5, 7), (6, 9), (7, 11), (8, 12), (9, 14), (10, 15)])
    return 224

MAPS = {1: (['B', 8, 'B', 8, 16, 16, 16, 16], [1, 3, 4, 5, 6, 7]),
        5: ([8, 'B', 8, 'B', 16, 16, 16, 16], [0, 2, 4, 5, 6, 7]),
        6: ([8, 'B', 8, 'B', 16, 16, 16, 16], [4, 5, 6, 7, 0, 2]),
        7: ([16, 16, 8, 'B', 16, 16, 8, 'B'], [0, 1, 4, 5, 2, 6]),
        8: ([8, 'B', 16, 16, 8, 'B', 16, 16], [2, 3, 6, 7, 0, 4]),
        9: ([14, 'B', 13, 13, 14, 13, 13, 'B'], None),
        10: (['B', 8, 'B', 8, 16, 16, 16, 16], [4, 5, 6, 7, 1, 3]),
        11: ([16, 16, 16, 16, 8, 'B', 8, 'B'], [0, 1, 2, 3, 4, 6])}
XMAP, XORD = MAPS[opt('map', 8)]
def tables():
    rt = lt = 0; base = 0; cl = 8; nonce = None
    for x, m in enumerate(XMAP):
        if m == 'B': rt |= (0x80 | cl) << (8 * x); cl += 1
    for x in (XORD or [i for i in range(8) if XMAP[i] != 'B']):
        m = XMAP[x]
        rt |= base << (8 * x); lt |= (16 + m) << (8 * x); base += m
        if m < 16 and nonce is None: nonce = (16 + m) * 8 + x
    assert base == 80
    return rt, lt, nonce
RT, LT, NONCE_WG = tables()
PFSH = opt('pfsh', 7)
PFM = opt('pfm', 120)
def build_all():
    a = Asm()
    a.launches.append("; @launch grid=(256,1,1) block=(512,1,1) lds=%d" % B_LDS)
    a.kernel(KNAME)
    stamp(a, 0)
    a("""
    s_load_dwordx8 s[40:47], s[0:1], 40
    s_load_dwordx2 s[4:5], s[0:1], 0
    s_load_dwordx4 s[48:51], s[0:1], 72
    s_load_dwordx4 s[8:11], s[0:1], 88
    s_load_dwordx2 s[6:7], s[0:1], 104
    v_lshrrev_b32 v2, 6, v0
    v_and_b32 v1, 63, v0
    v_readfirstlane_b32 s3, v2
    s_cmp_ge_u32 s2, 256
    s_cbranch_scc1 K_end
    PFSEL
    s_getpc_b64 s[24:25]
    v_lshlrev_b32 v4, PFSH, v0
    v_mov_b32 v5, s25
    v_add_co_u32 v4, vcc, s24, v4
    v_addc_co_u32 v5, vcc, 0, v5, vcc
    v_cmp_gt_u32 vcc, PFLIM, v0
    s_and_saveexec_b64 s[24:25], vcc
    s_cbranch_execz K_nopf
    global_load_dword v223, v[4:5], off
    """.replace("PFSH", str(PFSH)).replace("PFLIM", "(K_end-%s)/%d-1" % (KNAME, 1 << PFSH) if PFSH == 7 else "(K_end-%s)/32-4" % KNAME).replace("PFSEL", "s_and_b32 s24, s2, %d\n s_cbranch_scc1 K_nopf" % PFM if PFM else "s_nop 0"))
    a.label("K_nopf")
    a("""
    s_mov_b64 exec, -1
    s_and_b32 s30, s2, 7                  ; xcd guess
    s_lshr_b32 s29, s2, 3                 ; slot
    s_lshl_b32 s31, s30, 3
    s_mov_b32 s32, 0x%08x
    s_mov_b32 s33, 0x%08x
    s_lshr_b64 s[32:33], s[32:33], s31
    s_and_b32 s32, s32, 0xff              ; role byte
    s_mov_b32 s34, 0x%08x
    s_mov_b32 s35, 0x%08x
    s_lshr_b64 s[34:35], s[34:35], s31
    s_and_b32 s34, s34, 0xff              ; slot limit
    s_add_u32 s28, s32, s29
    s_sub_u32 s28, s28, 16                ; aidx
    """ % (RT & 0xffffffff, RT >> 32, LT & 0xffffffff, LT >> 32))
    a("""
    s_cmp_lt_u32 s29, 16
    s_cbranch_scc1 K_b
    s_cmp_ge_u32 s32, 128
    s_cbranch_scc1 K_b1
    s_cmp_lt_u32 s29, s34
    s_cbranch_scc1 K_a
    s_cmp_lg_u32 s2, NONCE_WG
    s_cbranch_scc1 K_end
    s_cmp_lg_u32 s3, 0
    s_cbranch_scc1 K_end
    s_memrealtime s[32:33]
    v_mov_b32 v5, 0
    s_waitcnt lgkmcnt(0)
    s_or_b32 s32, s32, 1
    v_mov_b32 v4, s32
    s_mov_b64 exec, 1
    """)
    a.srd(SDBG, 10, 256)
    a("buffer_store_dword v4, v5, %s, 0 offen %s" % (sr(SDBG, 4), SC))
    a("s_endpgm")
    a.label("K_b1")
    a("s_and_b32 s30, s32, 15\n s_sub_u32 s29, s29, 16")
    a.label("K_b")
    v2 = role_b(a)
    a.label("K_a")
    v1 = role_a(a)
    a.label("K_end")
    a("s_endpgm")
    a.kd(KNAME, max(v1, v2), 100 if PROF else 64)
    a.lines, n = hazard.fix(a.lines, verbose=("-v" in sys.argv))
    print("hazard nops inserted:", n, file=sys.stderr)
    return a.text().replace("NONCE_WG", str(NONCE_WG))

if __name__ == "__main__":
    out = sys.argv[1] if len(sys.argv) > 1 and not sys.argv[1].startswith("-") else "m.s"
    open(out, "w").write(build_all())
    import build
    build.build(out)
```
